```python
import torch

def _softmax(x, axis=-1):
    return torch.softmax(x, dim=axis)
def _gelu(x):
    return torch.nn.functional.gelu(x, approximate="tanh")
def _silu(x):
    return torch.nn.functional.silu(x)
def _sigmoid(x):
    return torch.sigmoid(x)
def _layernorm(x, axis=-1, eps=1e-5):
    m = x.mean(dim=axis, keepdim=True)
    v = x.var(dim=axis, keepdim=True, unbiased=False)
    return (x - m) / torch.sqrt(v + eps)
def _scatter_add(tgt, idx, src, axis=0):
    return tgt.clone().index_add_(axis, idx, src)
def _segment_sum(src, seg, n):
    out = torch.zeros((n,) + src.shape[1:], dtype=src.dtype)
    return out.index_add_(0, seg, src)
def _pad(x, pw):
    flat = tuple(v for pair in reversed(pw) for v in pair)
    return torch.nn.functional.pad(x, flat)

kernel_name = 'standalone__detection_seg_dino__vision'

def setup_inputs():

    _w = (lambda a: (lambda t: t.to(torch.bfloat16) if t.is_floating_point() else t)(torch.as_tensor(a)))
    H = W = (256 // 2) * 2
    C = 384
    Nq = 16
    sc = C ** -0.5
    return {
        "q": _w((lambda *s: torch.randn(*s, dtype=torch.bfloat16) * 0.05)(1, Nq, C)),
        "f0": _w((lambda *s: torch.randn(*s, dtype=torch.bfloat16) * 0.8)(1, H, W, C)),
        "f1": _w((lambda *s: torch.randn(*s, dtype=torch.bfloat16) * 0.8)(1, H // 2, W // 2, C)),
        "wq": _w((lambda *s: torch.randn(*s, dtype=torch.bfloat16) * 1.6)(C, C) * sc),
        "wk": _w((lambda *s: torch.randn(*s, dtype=torch.bfloat16) * 1.6)(C, C) * sc),
        "wv": _w((lambda *s: torch.randn(*s, dtype=torch.bfloat16) * 0.8)(C, C) * sc),
        "wo": _w((lambda *s: torch.randn(*s, dtype=torch.bfloat16) * 0.8)(C, C) * sc),
    }

def reference(q, f0, f1, wq, wk, wv, wo):
    B, H, W, C = f0.shape
    f1u = (lambda x, n, axis: torch.repeat_interleave(x, n, dim=axis))((lambda x, n, axis: torch.repeat_interleave(x, n, dim=axis))(f1, 2, axis=1), 2, axis=2)
    fused = f0 + f1u
    feats = _layernorm(fused.reshape(B, H * W, C), axis=-1)
    qn = _layernorm(q, axis=-1)
    Q = torch.einsum("bnc,cd->bnd", qn, wq)
    K = torch.einsum("bmc,cd->bmd", feats, wk)
    V = torch.einsum("bmc,cd->bmd", feats, wv)
    scale = C ** -0.5
    logits = torch.einsum("bnd,bmd->bnm", Q, K) * scale
    attn = _softmax(logits, axis=-1)
    ctx = torch.einsum("bnm,bmd->bnd", attn, V)
    return q + torch.einsum("bnd,dc->bnc", ctx, wo)
```

```python
import re

REG_RE = re.compile(r'\b([vas])(?:\[(\d+):(\d+)\]|(\d+))(?![\w\[])')

def regs_of(tok):
    out = []
    for m in REG_RE.finditer(tok):
        k = m.group(1)
        if m.group(2) is not None:
            out += [(k, i) for i in range(int(m.group(2)), int(m.group(3)) + 1)]
        else:
            out.append((k, int(m.group(4))))
    if re.search(r'\bvcc\b', tok): out += [('s', 106), ('s', 107)]
    if re.search(r'\bexec\b', tok): out += [('s', 126), ('s', 127)]
    if re.search(r'\bm0\b', tok): out.append(('s', 124))
    return out

TRANS = ('v_exp_f32', 'v_log_f32', 'v_rcp_f32', 'v_rsq_f32', 'v_sqrt_f32', 'v_sin_f32', 'v_cos_f32')

class Ins:
    __slots__ = ('text', 'mn', 'ops', 'wr', 'rd', 'kind', 'srcc', 'nowait')
    def __init__(self, text):
        self.text = text
        t = text.split(';')[0].strip()
        self.nowait = False
        if t.endswith(':'):
            self.mn = 'label'; self.kind = 'label'; self.wr = []; self.rd = []; self.ops = []; self.srcc = []
            return
        p = t.split(None, 1)
        self.mn = p[0]
        rest = p[1] if len(p) > 1 else ''
        self.ops = [o.strip() for o in rest.split(',')] if rest else []
        mn = self.mn
        self.srcc = []
        o = self.ops
        R = regs_of
        if mn.startswith('v_mfma'):
            self.kind = 'mfma'; self.wr = R(o[0]); self.rd = R(o[1]) + R(o[2]) + R(o[3]); self.srcc = R(o[3])
        elif mn.startswith('ds_read') or mn.startswith('ds_bpermute') or mn.startswith('ds_permute') or mn.startswith('ds_swizzle'):
            self.kind = 'dsr'; self.wr = R(o[0]); self.rd = sum((R(x) for x in o[1:]), [])
        elif mn.startswith('ds_') and '_rtn' in mn:
            self.kind = 'dsr'; self.wr = R(o[0]); self.rd = sum((R(x) for x in o[1:]), [])
        elif mn.startswith('ds_'):
            self.kind = 'dsw'; self.wr = []; self.rd = sum((R(x) for x in o), [])
        elif mn.startswith('buffer_load') or mn.startswith('global_load'):
            if re.search(r'\blds\b', rest) or 'load_lds' in mn:
                self.kind = 'vmdma'; self.wr = []; self.rd = sum((R(x) for x in o), []) + [('s', 124)]
            else:
                self.kind = 'vml'; self.wr = R(o[0]); self.rd = sum((R(x) for x in o[1:]), [])
        elif mn.startswith('buffer_atomic') or mn.startswith('global_atomic'):
            ret = bool(re.search(r'\bsc0\b', rest))
            self.kind = 'vml' if ret else 'vms'
            self.wr = R(o[0]) if ret else []
            self.rd = sum((R(x) for x in o), [])
        elif mn.startswith('buffer_store') or mn.startswith('global_store'):
            self.kind = 'vms'; self.wr = []; self.rd = sum((R(x) for x in o), [])
        elif mn.startswith('buffer_'):
            self.kind = 'other'; self.wr = []; self.rd = []
        elif mn.startswith('s_load') or mn.startswith('s_memrealtime') or mn.startswith('s_memtime'):
            self.kind = 'smem'; self.wr = R(o[0]); self.rd = sum((R(x) for x in o[1:]), [])
        elif mn.startswith('s_waitcnt'):
            self.kind = 'wait'; self.wr = []; self.rd = []
        elif mn.startswith('s_nop'):
            self.kind = 'nop'; self.wr = []; self.rd = []
        elif mn.startswith('s_cbranch') or mn == 's_branch':
            self.kind = 'branch'; self.wr = []; self.rd = []
        elif mn.startswith('s_cmp') or mn in ('s_barrier', 's_endpgm', 's_sleep', 's_setprio'):
            self.kind = 'salu'; self.wr = []; self.rd = sum((R(x) for x in o), [])
        elif mn.startswith('s_'):
            self.kind = 'salu'; self.wr = R(o[0]); self.rd = sum((R(x) for x in o[1:]), [])
            if 'saveexec' in mn: self.wr += [('s', 126), ('s', 127)]
        elif mn.startswith('v_'):
            self.kind = 'valu'
            if mn.startswith('v_cmp'):
                self.wr = R(o[0]); self.rd = sum((R(x) for x in o[1:]), [])
            elif mn.startswith('v_permlane16_swap') or mn.startswith('v_permlane32_swap'):
                self.wr = R(o[0]) + R(o[1]); self.rd = R(o[0]) + R(o[1])
            else:
                self.wr = R(o[0]); self.rd = sum((R(x) for x in o[1:]), [])
                if mn.startswith(('v_fmac', 'v_dot2c', 'v_pk_fmac', 'v_writelane')) or 'dpp' in mn or 'row_' in rest or 'quad_perm' in rest:
                    self.rd += R(o[0])
                if mn.startswith('v_cndmask') and len(o) == 3: self.rd += [('s', 106), ('s', 107)]
                if mn.startswith(('v_add_co', 'v_sub_co', 'v_addc_co')): self.wr += R(o[1])
        else:
            raise ValueError('cannot classify: ' + text)

    def is_dpp(self):
        return 'dpp' in self.mn or 'row_' in self.text.split(';')[0] or 'quad_perm' in self.text.split(';')[0]

class Asm:
    def __init__(self):
        self.items = []
    def __call__(self, text):
        for line in text.split('\n'):
            line = line.strip()
            if not line: continue
            if line.startswith(';') or line.startswith('.'):
                self.items.append(line)
            else:
                self.items.append(Ins(line))
    def nowait(self, text):
        i = Ins(text); i.nowait = True; self.items.append(i)

    def finish(self):
        return self._hazards(self._waits(self.items))

    def _waits(self, items):
        out = []
        lg = []
        vm = []
        smem = False
        def need(regs, wr_too):
            nonlocal lg, vm, smem
            s = set(regs)
            nl = None; nv = None
            for idx, d in enumerate(lg):
                if d & s: nl = len(lg) - 1 - idx
            for idx, d in enumerate(vm):
                if d & s: nv = len(vm) - 1 - idx
            parts = []
            if nv is not None:
                nv = min(nv, 63); parts.append(f'vmcnt({nv})'); vm = vm[len(vm) - nv:] if nv else []
            if nl is not None:
                if smem: nl = 0
                nl = min(nl, 15); parts.append(f'lgkmcnt({nl})'); lg = lg[len(lg) - nl:] if nl else []
                if nl == 0: smem = False
            if parts: out.append(Ins('s_waitcnt ' + ' '.join(parts)))
        for it in items:
            if isinstance(it, str): out.append(it); continue
            if it.kind == 'label' or it.kind == 'branch':
                pend = [d for d in lg if d]
                pv = [d for d in vm if d]
                if pend or pv:
                    parts = []
                    if pv: parts.append('vmcnt(0)'); vm = []
                    if pend: parts.append('lgkmcnt(0)'); lg = []; smem = False
                    out.append(Ins('s_waitcnt ' + ' '.join(parts) + ' ; auto drain at control flow'))
                out.append(it); continue
            if it.kind == 'wait':
                m = re.search(r'vmcnt\((\d+)\)', it.text)
                if m:
                    n = int(m.group(1)); vm = vm[len(vm) - n:] if n < len(vm) and n else ([] if n == 0 else vm)
                m = re.search(r'lgkmcnt\((\d+)\)', it.text)
                if m:
                    n = int(m.group(1)); lg = lg[len(lg) - n:] if n < len(lg) and n else ([] if n == 0 else lg)
                    if n == 0: smem = False
                out.append(it); continue
            if not it.nowait:
                need(it.rd + it.wr, True)
            out.append(it)
            if it.kind == 'dsr': lg.append(set(it.wr))
            elif it.kind == 'dsw': lg.append(set())
            elif it.kind == 'smem':
                lg.append(set(it.wr)); smem = True
                if 'x' in it.mn or 'mem' in it.mn: lg.append(set(it.wr))
            elif it.kind == 'vml': vm.append(set(it.wr))
            elif it.kind in ('vms', 'vmdma'): vm.append(set())
        return out

    def _hazards(self, items):
        out = []
        hist = []
        def dist_needed(cur):
            need = 0
            d = 0
            for prev, w in reversed(hist):
                if d >= 12: break
                n = self._rule(prev, cur)
                if n > d: need = max(need, n - d)
                d += w
            return need
        for it in items:
            if isinstance(it, str): out.append(it); continue
            if it.kind == 'label':
                out.append(it); continue
            n = dist_needed(it)
            while n > 0:
                k = min(n, 16)
                nop = Ins(f's_nop {k-1}')
                out.append(nop); hist.append((nop, k)); n -= k
            out.append(it)
            w = 1
            if it.kind == 'nop': w = int(it.ops[0]) + 1
            hist.append((it, w))
            if len(hist) > 24: hist = hist[-24:]
        return out

    @staticmethod
    def _rule(p, c):
        pw = set(p.wr)
        need = 0
        cr = set(c.rd); cw = set(c.wr)
        if p.kind == 'valu':
            vw = {r for r in pw if r[0] in 'va'}
            sw = {r for r in pw if r[0] == 's'}
            if c.kind == 'mfma' and vw & cr: need = max(need, 2)
            if c.kind == 'valu':
                if vw & cr:
                    if c.mn.startswith('v_permlane'): need = max(need, 2)
                    if c.is_dpp(): need = max(need, 2)
                    if c.mn.startswith(('v_readlane', 'v_readfirstlane')): need = max(need, 1)
                    if p.mn.replace('_e32', '').replace('_e64', '') in TRANS: need = max(need, 1)
                if sw & cr: need = max(need, 2)
            if c.kind in ('vml', 'vms', 'vmdma') and sw & cr: need = max(need, 5)
            if c.kind in ('salu', 'branch') and sw & cr: need = max(need, 1)
            if c.kind == 'branch' and sw and 'vcc' in c.mn: need = max(need, 1)
        if p.kind == 'mfma':
            passes = 8 if '32x32' in p.mn else 4
            if p.mn.endswith('16x16x4_f32'): passes = 8
            raw = {4: 8, 8: 12}[passes]
            if c.kind == 'mfma':
                a_b = set(regs_of(c.ops[1]) + regs_of(c.ops[2]))
                if pw & a_b: need = max(need, raw)
                cc = set(c.srcc)
                if pw & cc and cc != pw: need = max(need, {4: 6, 8: 10}[passes])
            elif c.kind in ('valu', 'dsr', 'dsw', 'vml', 'vms', 'vmdma'):
                if pw & (cr | cw): need = max(need, raw)
                if c.kind == 'valu' and set(p.srcc) & cw: need = max(need, {4: 3, 8: 7}[passes])
        if p.kind == 'salu' and ('s', 124) in pw and c.kind == 'vmdma': need = max(need, 1)
        if p.kind == 'salu' and c.kind == 'mfma' and (('s', 126) in pw): need = max(need, 1)
        if p.kind == 'vms' and ('x4' in p.mn or 'x3' in p.mn) and c.kind == 'valu':
            data = set(regs_of(p.ops[0])) if p.mn.startswith('buffer') else set(regs_of(p.ops[1]))
            if data & cw: need = max(need, 2)
        return need

def render(items):
    s = []
    for it in items:
        if isinstance(it, str): s.append(it)
        elif it.kind == 'label': s.append(it.text)
        else: s.append('    ' + it.text)
    return '\n'.join(s) + '\n'

def v(i, n=1):
    return f'v{i}' if n == 1 else f'v[{i}:{i+n-1}]'
def s(i, n=1):
    return f's{i}' if n == 1 else f's[{i}:{i+n-1}]'
```

```python
from asmgen import Asm, v, s

C = 384
F0_BYTES = 50331648
F1_BYTES = 12582912
W_BYTES = 294912
Q_BYTES = 12288
WS_BYTES = 268435456

WS_EPOCH = 0x0
WS_Q    = 0x1000
WS_QK   = 0x5000
WS_CTX  = 0x9000
WS_WVO  = 0x10000
WS_ML   = 0x60000
WS_PART = 0x100000
WS_STAMP = 0x8000000

R0, R1, R2 = 0, 49152, 98304
QKA = 147456
XB0, XB1, P1B = 147456, 152064, 156672
XB_M, XB_L = 4096, 4352
FLAGS = 160768
FL_A, FL_Q = FLAGS + 0, FLAGS + 4
FL_F1, FL_X, FL_PV, FL_QK = FLAGS + 16, FLAGS + 32, FLAGS + 48, FLAGS + 64
LDS_MAIN = 163840

LOG2E = 1.4426950408889634
def f32bits(x):
    import struct
    return struct.unpack('<I', struct.pack('<f', x))[0]

def srd(A, base, ptr, nbytes):
    A(f"s_mov_b32 s{base}, s{ptr}")
    A(f"s_and_b32 s{base+1}, s{ptr+1}, 0xffff")
    A(f"s_mov_b32 s{base+2}, {nbytes}")
    A(f"s_mov_b32 s{base+3}, 0x20000")

def stamp(A, k, en):
    if en: A(f"s_memrealtime s[{64+2*k}:{65+2*k}]")

def store_stamps(A, ks, rec_sreg, ws_srd, tmpv=2):
    A("s_waitcnt lgkmcnt(0)")
    A(f"s_lshl_b32 s63, s{rec_sreg}, 7")
    A(f"s_add_u32 s63, s63, {WS_STAMP}")
    A(f"v_mov_b32 v{tmpv}, 0")
    for k in ks:
        A(f"v_mov_b32 v{tmpv+2}, s{64+2*k}")
        A(f"v_mov_b32 v{tmpv+3}, s{65+2*k}")
        A(f"buffer_store_dwordx2 v[{tmpv+2}:{tmpv+3}], v{tmpv}, s[{ws_srd}:{ws_srd+3}], s63 offen offset:{8*k}")
        A("s_nop 0")
    A("s_waitcnt vmcnt(0)")

def mfma(A, d, a, b, c):
    cs = c if isinstance(c, str) else v(c, 4)
    A(f"v_mfma_f32_16x16x32_bf16 {v(d,4)}, {v(a,4)}, {v(b,4)}, {cs}")

def ones4(A, base):
    for i in range(4): A(f"v_mov_b32 v{base+i}, 0x3f803f80")

def xreduce_g(A, op, x, t):
    A(f"v_mov_b32 v{t}, v{x}")
    A(f"v_permlane32_swap_b32 v{t}, v{x}")
    A(f"{op} v{x}, v{x}, v{t}")
    A(f"v_mov_b32 v{t}, v{x}")
    A(f"v_permlane16_swap_b32 v{t}, v{x}")
    A(f"{op} v{x}, v{x}, v{t}")

def diag_masks(A, lane, sm, tmp):
    A(f"v_and_b32 v{tmp}, 3, v{lane}")
    for i in range(3):
        A(f"v_cmp_eq_u32 s[{sm+2*i}:{sm+2*i+1}], {i+1}, v{tmp}")

def diag_select(A, dst, g, sm):
    A(f"v_cndmask_b32 v{dst}, v{g}, v{g+1}, s[{sm}:{sm+1}]")
    A(f"v_cndmask_b32 v{dst}, v{dst}, v{g+2}, s[{sm+2}:{sm+3}]")
    A(f"v_cndmask_b32 v{dst}, v{dst}, v{g+3}, s[{sm+4}:{sm+5}]")

def slab_addr(A, lane, dst_g, dst_l, t):
    A(f"v_lshrrev_b32 v{t}, 1, v{lane}")
    A(f"v_mul_u32_u24 v{dst_g}, 768, v{t}")
    A(f"v_and_b32 v{t}, 1, v{lane}")
    A(f"v_lshlrev_b32 v{t}, 4, v{t}")
    A(f"v_add_u32 v{dst_g}, v{dst_g}, v{t}")
    A(f"v_lshrrev_b32 v{t}, 4, v{lane}")
    A(f"v_lshlrev_b32 v{dst_l}, 8, v{t}")
    A(f"v_bfe_u32 v{t}, v{lane}, 2, 2")
    A(f"v_lshlrev_b32 v{t}, 5, v{t}")
    A(f"v_add_u32 v{dst_l}, v{dst_l}, v{t}")
    A(f"v_and_b32 v{t}, 3, v{lane}")
    A(f"v_lshlrev_b32 v{t}, 3, v{t}")
    A(f"v_add_u32 v{dst_l}, v{dst_l}, v{t}")

def slab_load(A, srdb, scol, vg, ldsbase_s, stmp, flags=""):
    for p in range(12):
        if isinstance(ldsbase_s, int): A(f"s_mov_b32 m0, {ldsbase_s + p*1024}")
        else: A(f"s_add_u32 m0, {ldsbase_s}, {p*1024}")
        A(f"s_add_u32 s{stmp}, s{scol}, {p*24576}")
        A(f"buffer_load_dwordx4 v{vg}, s[{srdb}:{srdb+3}], s{stmp} offen {flags} lds")

def slab_read(A, dst, vl, off=0):
    for ks in range(12):
        A(f"ds_read_b64_tr_b16 v[{dst+4*ks}:{dst+4*ks+1}], v{vl} offset:{off + ks*1024}")
        A(f"ds_read_b64_tr_b16 v[{dst+4*ks+2}:{dst+4*ks+3}], v{vl} offset:{off + ks*1024 + 128}")

def rowop_addr(A, lane, dst, t):
    A(f"v_and_b32 v{t}, 15, v{lane}")
    A(f"v_mul_u32_u24 v{dst}, 768, v{t}")
    A(f"v_lshrrev_b32 v{t}, 4, v{lane}")
    A(f"v_lshlrev_b32 v{t}, 4, v{t}")
    A(f"v_add_u32 v{dst}, v{dst}, v{t}")

def rowop_load(A, dst, voff, srdb, soff, flags=""):
    for ks in range(12):
        A(f"buffer_load_dwordx4 v[{dst+4*ks}:{dst+4*ks+3}], v{voff}, s[{srdb}:{srdb+3}], {soff} offen offset:{ks*64} {flags}")

def scatter_tile_addr(A, lane, dst, sJ, t, stmp):
    A(f"s_lshr_b32 s{stmp}, s{sJ}, 1")
    A(f"s_lshl_b32 s{stmp}, s{stmp}, 10")
    A(f"s_and_b32 s{stmp+1}, s{sJ}, 1")
    A(f"s_lshl_b32 s{stmp+1}, s{stmp+1}, 9")
    A(f"s_add_u32 s{stmp}, s{stmp}, s{stmp+1}")
    A(f"v_and_b32 v{dst}, 15, v{lane}")
    A(f"v_lshlrev_b32 v{dst}, 4, v{dst}")
    A(f"v_lshrrev_b32 v{t}, 5, v{lane}")
    A(f"v_lshlrev_b32 v{t}, 8, v{t}")
    A(f"v_add_u32 v{dst}, v{dst}, v{t}")
    A(f"v_bfe_u32 v{t}, v{lane}, 4, 1")
    A(f"v_lshlrev_b32 v{t}, 3, v{t}")
    A(f"v_add_u32 v{dst}, v{dst}, v{t}")
    A(f"v_add_u32 v{dst}, s{stmp}, v{dst}")
```

```python
import sys
from asmgen import Asm, render, v, s
from roles import *
from build import build

STAMPS = False

def kernel_head(name):
    return f""".globl {name}
.p2align 8
.type {name},@function
{name}:
"""
def kernel_desc(name, nv, nsg=102):
    return f""".amdhsa_kernel {name}
  .amdhsa_next_free_vgpr {nv}
  .amdhsa_next_free_sgpr {nsg}
  .amdhsa_accum_offset {nv}
  .amdhsa_group_segment_fixed_size 0
  .amdhsa_kernarg_size 80
  .amdhsa_user_sgpr_count 2
  .amdhsa_user_sgpr_kernarg_segment_ptr 1
  .amdhsa_system_sgpr_workgroup_id_x 1
  .amdhsa_float_denorm_mode_32 3
.end_amdhsa_kernel
"""

def load_args(A):
    A("s_load_dwordx16 s[4:19], s[0:1], 0")
    A("s_load_dwordx4 s[20:23], s[0:1], 64")

uid = [0]
def lab(p):
    uid[0] += 1
    return f"L_{p}_{uid[0]}"

STO = 62
def spin_ge(A, vaddr, off, val, t, n=1):
    L, D = lab("spin"), lab("done")
    A(f"{L}:")
    if n == 1:
        A(f"ds_read_b32 v{t}, v{vaddr} offset:{off}")
    else:
        A(f"ds_read_b128 v[{t}:{t+3}], v{vaddr} offset:{off}")
        A(f"v_min_u32 v{t}, v{t}, v{t+1}")
        A(f"v_min_u32 v{t+2}, v{t+2}, v{t+3}")
        A(f"v_min_u32 v{t}, v{t}, v{t+2}")
    A(f"v_readfirstlane_b32 s61, v{t}")
    A(f"s_cmp_ge_u32 s61, {val}")
    A(f"s_cbranch_scc1 {D}")
    A(f"s_sub_u32 s{STO}, s{STO}, 1")
    A(f"s_cbranch_scc0 {L}")
    A(f"s_mov_b32 s{STO}, 0")
    A(f"{D}:")

def set_flag(A, vaddr, off, val, t):
    A(f"v_mov_b32 v{t}, {val}")
    A(f"ds_write_b32 v{vaddr}, v{t} offset:{off}")

def gen_pre1():
    A = Asm()
    A("s_cmp_ge_u32 s2, 600\ns_cbranch_scc1 L_pre1_end")
    load_args(A)
    A("s_waitcnt lgkmcnt(0)")
    srd(A, 32, 22, WS_BYTES)
    slab_addr(A, 0, 1, 2, 3)
    rowop_addr(A, 0, 4, 3)
    ones4(A, 8)
    A("s_cmp_ge_u32 s2, 24\ns_cbranch_scc1 L_pre1_wvo")
    srd(A, 24, 10, W_BYTES)
    srd(A, 28, 4, Q_BYTES)
    A("s_lshl_b32 s40, s2, 5")
    slab_load(A, 24, 40, 1, 0, 41)
    QO, WO = 16, 64
    rowop_load(A, QO, 4, 28, 0)
    diag_masks(A, 0, 44, 3)
    scatter_tile_addr(A, 0, 5, 2, 3, 42)
    A("v_and_b32 v6, 15, v0\nv_lshrrev_b32 v3, 2, v6\nv_lshlrev_b32 v3, 4, v3\nv_add_u32 v6, v6, v3\nv_lshlrev_b32 v6, 2, v6")
    A("s_waitcnt vmcnt(0)")
    slab_read(A, WO, 2)
    D, CS, S_, G = 112, 116, 120, 124
    for ks in range(12):
        mfma(A, S_, 8, QO+4*ks, "0" if ks == 0 else S_)
        mfma(A, G, QO+4*ks, QO+4*ks, "0" if ks == 0 else G)
        mfma(A, D, WO+4*ks, QO+4*ks, "0" if ks == 0 else D)
        mfma(A, CS, WO+4*ks, 8, "0" if ks == 0 else CS)
    diag_select(A, 128, G, 44)
    A("ds_bpermute_b32 v129, v6, v128")
    A(f"s_mov_b32 s40, {f32bits(1.0/C)}")
    A(f"v_mul_f32 v130, s40, v{S_}")
    A("v_mul_f32 v131, v130, v130")
    A("v_fma_f32 v131, v129, s40, -v131")
    A("v_max_f32 v131, 0, v131")
    A(f"v_add_f32 v131, {f32bits(1e-5)}, v131")
    A("v_rsq_f32 v131, v131")
    for r in range(4):
        A(f"v_fma_f32 v{D+r}, -v130, v{CS+r}, v{D+r}")
        A(f"v_mul_f32 v{D+r}, v{D+r}, v131")
    A(f"v_cvt_pk_bf16_f32 v132, v{D}, v{D+1}")
    A(f"v_cvt_pk_bf16_f32 v133, v{D+2}, v{D+3}")
    A(f"s_mov_b32 s40, {WS_Q}")
    A("buffer_store_dwordx2 v[132:133], v5, s[32:35], s40 offen")
    A("s_endpgm")
    A("L_pre1_wvo:")
    srd(A, 24, 16, W_BYTES)
    srd(A, 28, 14, W_BYTES)
    A("s_sub_u32 s40, s2, 24\ns_mul_i32 s41, s40, 2731\ns_lshr_b32 s41, s41, 16")
    A("s_mul_i32 s42, s41, 24\ns_sub_u32 s42, s40, s42")
    A("s_lshl_b32 s43, s42, 5")
    slab_load(A, 24, 43, 1, 0, 44)
    A("s_mul_i32 s45, s41, 12288")
    WV, WO = 16, 64
    rowop_load(A, WV, 4, 28, "s45")
    A("s_mul_i32 s46, s42, 12\ns_lshr_b32 s47, s41, 1\ns_add_u32 s46, s46, s47\ns_lshl_b32 s46, s46, 10")
    A(f"s_and_b32 s47, s41, 1\ns_lshl_b32 s47, s47, 3\ns_add_u32 s46, s46, s47\ns_add_u32 s46, s46, {WS_WVO}")
    A("v_lshlrev_b32 v5, 4, v0")
    A("s_waitcnt vmcnt(0)")
    slab_read(A, WO, 2)
    D = 112
    for ks in range(12):
        mfma(A, D, WV+4*ks, WO+4*ks, "0" if ks == 0 else D)
    A(f"v_cvt_pk_bf16_f32 v132, v{D}, v{D+1}")
    A(f"v_cvt_pk_bf16_f32 v133, v{D+2}, v{D+3}")
    A("buffer_store_dwordx2 v[132:133], v5, s[32:35], s46 offen")
    A("L_pre1_end:\ns_endpgm")
    return render(A.finish())

def gen_pre2():
    A = Asm()
    A("s_cmp_ge_u32 s2, 24\ns_cbranch_scc1 L_pre2_end")
    load_args(A)
    A("s_waitcnt lgkmcnt(0)")
    srd(A, 32, 22, WS_BYTES)
    srd(A, 28, 12, W_BYTES)
    rowop_addr(A, 0, 4, 3)
    WK, QO = 16, 64
    A("s_mul_i32 s45, s2, 12288")
    rowop_load(A, WK, 4, 28, "s45")
    A("v_lshlrev_b32 v1, 4, v0")
    for ks in range(12):
        A(f"s_mov_b32 s40, {WS_Q + ks*1024}")
        A(f"buffer_load_dwordx4 v[{QO+4*ks}:{QO+4*ks+3}], v1, s[32:35], s40 offen")
    scatter_tile_addr(A, 0, 5, 2, 3, 42)
    D = 112
    for ks in range(12):
        mfma(A, D, WK+4*ks, QO+4*ks, "0" if ks == 0 else D)
    A(f"s_mov_b32 s40, {f32bits(LOG2E * C**-0.5)}")
    for r in range(4): A(f"v_mul_f32 v{D+r}, s40, v{D+r}")
    A(f"v_cvt_pk_bf16_f32 v132, v{D}, v{D+1}")
    A(f"v_cvt_pk_bf16_f32 v133, v{D+2}, v{D+3}")
    A(f"s_mov_b32 s40, {WS_QK}")
    A("buffer_store_dwordx2 v[132:133], v5, s[32:35], s40 offen")
    A("L_pre2_end:\ns_endpgm")
    return render(A.finish())

REG = [R1, R2, R0, R1]

def loader_pieces():
    def tile(kind, k, w, region):
        out = []
        for sp in range(3):
            for q in range(4):
                lds = region + w*12288 + sp*4096 + q*1024
                if kind == "f1":
                    out.append((sp, (f"v{10+(q&1)}", "s[28:31]", "s41", w*12288 + sp*256 + (q>>1)*8*768, lds)))
                else:
                    a, b = k >> 1, k & 1
                    out.append((sp, (f"v{12+(q&1)}", "s[24:27]", "s40", a*196608 + w*24576 + b*768 + sp*256 + (q>>1)*8*1536, lds)))
        return out
    groups = []
    for kind, k, region in [("f1", 0, R0)] + [("f0", k, REG[k]) for k in range(4)]:
        tl = [tile(kind, k, w, region) for w in range(4)]
        g = []
        for sp in range(3):
            for w in range(4):
                g += [p[1] for p in tl[w] if p[0] == sp]
        groups.append(g)
    return groups

def gen_loader_wave(A, depth, flags="nt"):
    A("s_lshr_b32 s42, s2, 1\ns_and_b32 s43, s2, 1")
    A("s_mul_i32 s40, s42, 393216\ns_mul_i32 s44, s43, 98304\ns_add_u32 s40, s40, s44")
    A("s_mul_i32 s41, s42, 98304\ns_mul_i32 s44, s43, 49152\ns_add_u32 s41, s41, s44")
    A("v_lshrrev_b32 v1, 4, v0\nv_and_b32 v2, 15, v0")
    for odd in (0, 1):
        A(f"v_add_u32 v3, {4*odd}, v1\nv_lshlrev_b32 v4, 1, v3\nv_xor_b32 v4, v4, v2\nv_and_b32 v4, 15, v4\nv_lshlrev_b32 v4, 4, v4")
        A(f"v_mul_u32_u24 v5, 768, v3\nv_add_u32 v{10+odd}, v5, v4")
        A(f"v_mul_u32_u24 v5, 1536, v3\nv_add_u32 v{12+odd}, v5, v4")
    A("v_lshlrev_b32 v14, 4, v0")
    A(f"v_mov_b32 v15, {FLAGS}")
    groups = loader_pieces()
    seq = [("qk", i) for i in range(12)]
    for gi, g in enumerate(groups):
        if gi == 3: seq.append(("waitf1",))
        if gi == 4: seq.append(("waitpv",))
        seq += [("p", p) for p in g]
    total = 12 + 240
    thresholds = [(12, FL_Q - FLAGS, 1)] + [(12 + 16*(sidx+1), FL_A - FLAGS, sidx+1) for sidx in range(15)]
    issued = 0; landed = 0
    barrier_done = False
    def publish():
        nonlocal thresholds
        hit = [t for t in thresholds if t[0] <= landed]
        thresholds = [t for t in thresholds if t[0] > landed]
        last = {}
        for t in hit: last[t[1]] = t[2]
        for off, val in last.items():
            set_flag(A, 15, off, val, 6)
    for it in seq:
        if it[0] == "waitf1":
            spin_ge(A, 15, FL_F1 - FLAGS, 1, 16, 4); continue
        if it[0] == "waitpv":
            stamp(A, 5, STAMPS)
            spin_ge(A, 15, FL_PV - FLAGS, 1, 16, 4)
            stamp(A, 6, STAMPS); continue
        if issued >= depth:
            if not barrier_done:
                A("s_barrier"); barrier_done = True
            A(f"s_waitcnt vmcnt({depth-1})")
            landed = issued - depth + 1
            publish()
        if it[0] == "qk":
            A(f"s_mov_b32 m0, {QKA + it[1]*1024}")
            A(f"s_mov_b32 s44, {WS_QK + it[1]*1024}")
            A(f"buffer_load_dwordx4 v14, s[32:35], s44 offen lds")
        else:
            vo, sr, base, off, lds = it[1]
            A(f"s_mov_b32 m0, {lds}")
            A(f"s_add_u32 s44, {base}, {off}")
            A(f"buffer_load_dwordx4 {vo}, {sr}, s44 offen {flags} lds")
        issued += 1
    stamp(A, 2, STAMPS)
    for t in list(thresholds):
        A(f"s_waitcnt vmcnt({total - t[0]})")
        landed = t[0]
        publish()
    stamp(A, 4, STAMPS)

XA, TRA = 10, 14
XW, XR, XMW, XMR, FLB, FLO, BPA = 20, 21, 22, 23, 24, 25, 26
SQ, MW, LW, MM = 27, 28, 29, 30
P1, ONES, F1O, QKO, XBUF = 32, 36, 40, 88, 136
ACL, ACG1, ACG2, ACS, L1, S1, G3, ACC = 152, 156, 160, 164, 168, 172, 176, 180
PR, PB, M4, L4 = 204, 220, 228, 232
TRQ = [236, 240, 244, 248, 252, 136, 140, 144, 148]
T = 2

def c_setup(A):
    A("v_and_b32 v1, 15, v0\nv_lshrrev_b32 v2, 4, v0")
    A("s_mul_i32 s40, s3, 12288")
    A("v_and_b32 v3, 7, v1\nv_lshlrev_b32 v3, 1, v3")
    A("v_lshlrev_b32 v4, 8, v1\nv_add_u32 v4, s40, v4")
    for q in range(4):
        A(f"v_add_u32 v5, {4*q}, v2\nv_xor_b32 v5, v5, v3\nv_lshlrev_b32 v5, 4, v5\nv_add_u32 v{XA+q}, v4, v5")
    A("v_bfe_u32 v3, v0, 2, 2\nv_lshlrev_b32 v4, 2, v2\nv_add_u32 v3, v3, v4")
    A("v_and_b32 v4, 7, v3")
    A("v_lshlrev_b32 v5, 8, v3")
    A("v_bfe_u32 v6, v0, 1, 1\nv_lshlrev_b32 v6, 4, v6\nv_add_u32 v5, v5, v6")
    A("v_and_b32 v6, 1, v0\nv_lshlrev_b32 v6, 3, v6\nv_add_u32 v5, v5, v6")
    A("s_mul_i32 s41, s3, 6")
    for i in range(6):
        A(f"s_add_u32 s42, s41, {i}\ns_and_b32 s43, s42, 7\ns_lshr_b32 s42, s42, 3\ns_lshl_b32 s42, s42, 12")
        A(f"v_xor_b32 v6, s43, v4\nv_lshlrev_b32 v6, 5, v6\nv_add_u32 v6, v6, v5\nv_add_u32 v{TRA+i}, s42, v6")
    A(f"s_lshl_b32 s42, s3, 10\ns_add_u32 s42, s42, {XB0}")
    A(f"v_lshlrev_b32 v3, 4, v0\nv_add_u32 v{XW}, s42, v3\nv_add_u32 v{XR}, {XB0}, v3")
    A(f"v_lshlrev_b32 v3, 4, v1\nv_add_u32 v{XMR}, {XB0+XB_M}, v3")
    A(f"s_lshl_b32 s42, s3, 2\nv_add_u32 v{XMW}, s42, v{XMR}")
    A(f"v_mov_b32 v{FLB}, {FLAGS}\nv_add_u32 v{FLO}, s42, v{FLB}")
    A(f"v_mul_u32_u24 v{BPA}, 80, v2")
    ones4(A, ONES)
    diag_masks(A, 0, 46, 3)

def xop_read(A, dst, q, off):
    A(f"ds_read_b128 v[{dst}:{dst+3}], v{XA+q} offset:{off}")

def c_f1(A):
    spin_ge(A, FLB, FL_A - FLAGS, 3, T)
    for ks in range(12):
        xop_read(A, F1O+4*ks, ks & 3, R0 + (ks >> 2)*4096)
    set_flag(A, FLO, FL_F1 - FLAGS, 1, T)
    for ks in range(12):
        mfma(A, G3, F1O+4*ks, F1O+4*ks, "0" if ks == 0 else G3)
        mfma(A, S1, F1O+4*ks, ONES, "0" if ks == 0 else S1)

def c_qk(A):
    spin_ge(A, FLB, FL_Q - FLAGS, 1, T)
    A(f"v_lshlrev_b32 v{T}, 4, v0\nv_add_u32 v{T}, {QKA}, v{T}")
    for ks in range(12):
        A(f"ds_read_b128 v[{QKO+4*ks}:{QKO+4*ks+3}], v{T} offset:{ks*1024}")
    set_flag(A, FLO, FL_QK - FLAGS, 1, T+1)
    for ks in range(12):
        mfma(A, L1, F1O+4*ks, QKO+4*ks, "0" if ks == 0 else L1)
        mfma(A, ACS, ONES, QKO+4*ks, "0" if ks == 0 else ACS)
    A(f"v_mov_b32 v{SQ}, v{ACS}")

def shift_addr(A, delta_x, delta_t):
    if delta_x:
        for q in range(4): A(f"v_add_u32 v{XA+q}, {delta_x & 0xffffffff}, v{XA+q}")
    if delta_t:
        for i in range(6): A(f"v_add_u32 v{TRA+i}, {delta_t & 0xffffffff}, v{TRA+i}")

def c_aphase(A, k):
    for sp in range(3):
        spin_ge(A, FLB, FL_A - FLAGS, 3*(k+1) + sp + 1, T)
        for q in range(4):
            xop_read(A, XBUF + 4*q, q, sp*4096)
        for q in range(4):
            ks = 4*sp + q
            x = XBUF + 4*q
            mfma(A, ACG1, x, x, G3 if ks == 0 else ACG1)
            mfma(A, ACG2, x, F1O+4*ks, "0" if ks == 0 else ACG2)
            mfma(A, ACS, x, ONES, S1 if ks == 0 else ACS)
            mfma(A, ACL, x, QKO+4*ks, L1 if ks == 0 else ACL)

def c_stats(A, k):
    t = T
    for r in range(4): A(f"v_fma_f32 v{ACG1+r}, v{ACG2+r}, 2.0, v{ACG1+r}")
    diag_select(A, t, ACG1, 46)
    for r in range(4): A(f"ds_bpermute_b32 v{ACG2+r}, v{BPA}, v{t} offset:{4*r}")
    for r in range(4): A(f"v_mul_f32 v{ACS+r}, s52, v{ACS+r}")
    for r in range(4): A(f"v_fma_f32 v{ACL+r}, -v{ACS+r}, v{SQ}, v{ACL+r}")
    for r in range(4): A(f"v_mul_f32 v{ACS+r}, v{ACS+r}, v{ACS+r}")
    for r in range(4): A(f"v_fma_f32 v{ACG2+r}, v{ACG2+r}, s52, -v{ACS+r}")
    for r in range(4): A(f"v_max_f32 v{ACG2+r}, 0, v{ACG2+r}")
    for r in range(4): A(f"v_add_f32 v{ACG2+r}, s53, v{ACG2+r}")
    for r in range(4): A(f"v_rsq_f32 v{ACG2+r}, v{ACG2+r}")
    for r in range(4): A(f"v_mul_f32 v{ACL+r}, v{ACL+r}, v{ACG2+r}")
    A(f"v_max3_f32 v{t}, v{ACL}, v{ACL+1}, v{ACL+2}")
    A(f"v_max_f32 v{t}, v{t}, v{ACL+3}")
    xreduce_g(A, "v_max_f32", t, t+1)
    if k == 0:
        A(f"v_mov_b32 v{MW}, v{t}")
    else:
        A(f"v_max_f32 v{t}, v{t}, v{MW}")
        A(f"v_sub_f32 v{t+1}, v{MW}, v{t}")
        A(f"v_exp_f32 v{t+1}, v{t+1}")
        A(f"v_mov_b32 v{MW}, v{t}")
    for r in range(4): A(f"v_sub_f32 v{ACL+r}, v{ACL+r}, v{MW}")
    for r in range(4): A(f"v_exp_f32 v{ACL+r}, v{ACL+r}")
    A(f"v_add_f32 v{t+2}, v{ACL}, v{ACL+1}")
    A(f"v_add_f32 v{t+3}, v{ACL+2}, v{ACL+3}")
    A(f"v_add_f32 v{t+2}, v{t+2}, v{t+3}")
    if k == 0: A(f"v_mov_b32 v{LW}, v{t+2}")
    else:      A(f"v_fma_f32 v{LW}, v{LW}, v{t+1}, v{t+2}")
    for r in range(4): A(f"v_mul_f32 v{ACL+r}, v{ACL+r}, v{ACG2+r}")
    for r in range(4):
        if k == 0: A(f"v_mov_b32 v{P1+r}, v{ACL+r}")
        else:      A(f"v_fma_f32 v{P1+r}, v{P1+r}, v{t+1}, v{ACL+r}")

def c_exchange_write(A, k):
    xb = (k & 1) * (XB1 - XB0)
    if k == 0:
        spin_ge(A, FLB, FL_QK - FLAGS, 1, T, 4)
    A(f"ds_write_b128 v{XW}, v[{ACL}:{ACL+3}] offset:{xb}")
    A(f"ds_write_b32 v{XMW}, v{MW} offset:{xb}")
    if k == 3:
        A(f"ds_write_b128 v{XW}, v[{P1}:{P1+3}] offset:{P1B - XB0}")
        A(f"v_mov_b32 v{T}, v{LW}")
        xreduce_g(A, "v_add_f32", T, T+1)
        A(f"ds_write_b32 v{XMW}, v{T} offset:{xb + XB_L - XB_M}")
    set_flag(A, FLO, FL_X - FLAGS, k+1, T+2)

def tr_reads(A, quads, regionoff):
    for (i, pair, reg) in quads:
        A(f"ds_read_b64_tr_b16 v[{reg}:{reg+1}], v{TRA+i} offset:{regionoff + (2*pair)*12288}")
        A(f"ds_read_b64_tr_b16 v[{reg+2}:{reg+3}], v{TRA+i} offset:{regionoff + (2*pair+1)*12288}")

def c_pv_mfmas(A, first_zero):
    order = [(i, pair) for i in range(6) for pair in range(2)]
    quads = [(i, p, TRQ[n]) for n, (i, p) in enumerate(order[:9])]
    tr_reads(A, quads, 0)
    late = []
    for n, (i, p) in enumerate(order):
        if n < 9: reg = TRQ[n]
        else: reg = late[n-9][2]
        c = "0" if (first_zero and p == 0) else ACC+4*i
        mfma(A, ACC+4*i, reg, PB+4*p, c)
        if n < 3:
            q = (order[9+n][0], order[9+n][1], TRQ[n])
            late.append(q)
            tr_reads(A, [q], 0)

def scale_pack(A, src_off, fac):
    for tt in range(4):
        A(f"ds_read_b128 v[{PR+4*tt}:{PR+4*tt+3}], v{XR} offset:{src_off + tt*1024}")
    for tt in range(4):
        for r in range(4): A(f"v_mul_f32 v{PR+4*tt+r}, v{PR+4*tt+r}, v{fac+tt}")
        A(f"v_cvt_pk_bf16_f32 v{PB+2*tt}, v{PR+4*tt}, v{PR+4*tt+1}")
        A(f"v_cvt_pk_bf16_f32 v{PB+2*tt+1}, v{PR+4*tt+2}, v{PR+4*tt+3}")

def c_bphase(A, k):
    xb = (k & 1) * (XB1 - XB0)
    spin_ge(A, FLB, FL_X - FLAGS, k+1, T, 4)
    A(f"ds_read_b128 v[{M4}:{M4+3}], v{XMR} offset:{xb}")
    if k == 3: A(f"ds_read_b128 v[{L4}:{L4+3}], v{XMR} offset:{xb + XB_L - XB_M}")
    t = T
    A(f"v_max3_f32 v{t}, v{M4}, v{M4+1}, v{M4+2}")
    A(f"v_max_f32 v{t}, v{t}, v{M4+3}")
    if k > 0:
        A(f"v_max_f32 v{t}, v{t}, v{MM}")
        A(f"v_sub_f32 v{t+1}, v{MM}, v{t}")
        A(f"v_exp_f32 v{t+1}, v{t+1}")
    A(f"v_mov_b32 v{MM}, v{t}")
    for tt in range(4): A(f"v_sub_f32 v{M4+tt}, v{M4+tt}, v{MM}")
    for tt in range(4): A(f"v_exp_f32 v{M4+tt}, v{M4+tt}")
    scale_pack(A, xb, M4)
    if k > 0:
        for i in range(24): A(f"v_mul_f32 v{ACC+i}, v{ACC+i}, v{t+1}")
    c_pv_mfmas(A, k == 0)
    set_flag(A, FLO, FL_PV - FLAGS, k+1, T+2)

def c_final(A):
    scale_pack(A, P1B - XB0, M4)
    c_pv_mfmas(A, False)
    t = T
    A(f"v_mul_f32 v{t}, v{L4}, v{M4}")
    for tt in range(1, 4): A(f"v_fma_f32 v{t}, v{L4+tt}, v{M4+tt}, v{t}")
    A(f"v_mov_b32 v{t+1}, v{t}\nv_mov_b32 v{t}, v{MM}")
    A(f"v_mov_b32 v{PR}, v{t}\nv_mov_b32 v{PR+1}, v{t+1}")
    A("v_and_b32 v1, 15, v0\nv_lshrrev_b32 v2, 4, v0")
    A("v_lshrrev_b32 v3, 2, v1\nv_and_b32 v4, 3, v1")
    A("v_lshlrev_b32 v5, 2, v3\nv_add_u32 v5, v5, v2")
    A("v_mul_u32_u24 v5, 196608, v5")
    A("v_lshlrev_b32 v6, 4, v4\nv_add_u32 v5, v5, v6")
    A(f"s_mul_i32 s42, s3, {3*16384}\ns_lshl_b32 s43, s2, 6\ns_add_u32 s42, s42, s43\ns_add_u32 s42, s42, {WS_PART}")
    for j in range(3):
        for h in range(2):
            a = ACC + 4*(2*j+h)
            A(f"v_cvt_pk_bf16_f32 v{PB+2*h}, v{a}, v{a+1}")
            A(f"v_cvt_pk_bf16_f32 v{PB+2*h+1}, v{a+2}, v{a+3}")
        A(f"buffer_store_dwordx4 v[{PB}:{PB+3}], v5, s[32:35], s42 offen")
        if j < 2: A("s_add_u32 s42, s42, 16384")
    Lskip = lab("skipml")
    A(f"s_cmp_lg_u32 s3, 0\ns_cbranch_scc1 {Lskip}")
    A("v_lshlrev_b32 v6, 13, v3\nv_lshlrev_b32 v7, 3, v4\nv_add_u32 v6, v6, v7")
    A(f"s_lshl_b32 s43, s2, 5\ns_add_u32 s43, s43, {WS_ML}")
    A("s_mov_b64 exec, 0xffff")
    A(f"buffer_store_dwordx2 v[{PR}:{PR+1}], v6, s[32:35], s43 offen")
    A("s_mov_b64 exec, -1")
    A(f"{Lskip}:")

def gen_c_wave(A):
    c_setup(A)
    A(f"s_mov_b32 s52, {f32bits(1.0/C)}\ns_mov_b32 s53, {f32bits(1e-5)}")
    A("s_barrier")
    c_f1(A)
    stamp(A, 1, STAMPS)
    c_qk(A)
    stamp(A, 2, STAMPS)
    xcur, tcur = 0, 0
    for k in range(4):
        shift_addr(A, REG[k] - xcur, REG[k] - tcur)
        xcur = tcur = REG[k]
        c_aphase(A, k)
        stamp(A, 3+2*k, STAMPS)
        c_stats(A, k)
        c_exchange_write(A, k)
        c_bphase(A, k)
        if k == 2:
            shift_addr(A, R2 - xcur, 0); xcur = R2
            for ks in range(12):
                A(f"ds_write_b128 v{XA + (ks&3)}, v[{F1O+4*ks}:{F1O+4*ks+3}] offset:{(ks>>2)*4096}")
        stamp(A, 4+2*k, STAMPS)
    shift_addr(A, 0, R2 - tcur)
    c_final(A)
    stamp(A, 11, STAMPS)

def gen_main(depth=32):
    A = Asm()
    A("s_cmp_ge_u32 s2, 256\ns_cbranch_scc1 L_main_end")
    stamp(A, 0, STAMPS)
    load_args(A)
    A("v_lshrrev_b32 v1, 6, v0\nv_and_b32 v0, 63, v0\ns_nop 0\nv_readfirstlane_b32 s3, v1")
    A(f"s_mov_b32 s{STO}, 0x40000")
    A("s_waitcnt lgkmcnt(0)")
    srd(A, 24, 6, F0_BYTES)
    srd(A, 28, 8, F1_BYTES)
    srd(A, 32, 22, WS_BYTES)
    A("s_cmp_eq_u32 s3, 4\ns_cbranch_scc1 L_main_loader")
    A(f"s_cmp_lg_u32 s3, 0\ns_cbranch_scc1 L_main_noinit")
    A(f"v_mov_b32 v1, 0\nv_lshlrev_b32 v2, 2, v0\nv_add_u32 v2, {FLAGS}, v2\nds_write_b32 v2, v1\ns_waitcnt lgkmcnt(0)")
    A("L_main_noinit:")
    gen_c_wave(A)
    if STAMPS:
        A("s_mul_i32 s60, s2, 5\ns_add_u32 s60, s60, s3")
        store_stamps(A, list(range(12)), 60, 32)
    A("s_endpgm")
    A("L_main_loader:")
    gen_loader_wave(A, depth)
    if STAMPS:
        A("s_mul_i32 s60, s2, 5\ns_add_u32 s60, s60, s3")
        store_stamps(A, [0, 2, 4, 5, 6], 60, 32)
    A("L_main_end:\ns_endpgm")
    return render(A.finish())

def red_body(A, lds_base=0):
    A("s_mul_i32 s41, s40, 5462\ns_lshr_b32 s41, s41, 16")
    A("s_mul_i32 s42, s41, 12\ns_sub_u32 s42, s40, s42")
    A("s_lshr_b32 s43, s41, 2\ns_and_b32 s44, s41, 3")
    A(f"s_lshl_b32 s45, s40, 14\ns_lshl_b32 s46, s3, 12\ns_add_u32 s45, s45, s46\ns_add_u32 s45, s45, {WS_PART}")
    A(f"s_lshl_b32 s46, s43, 13\ns_lshl_b32 s47, s3, 11\ns_add_u32 s46, s46, s47\ns_add_u32 s46, s46, {WS_ML}")
    A("v_lshlrev_b32 v1, 4, v0\nv_lshlrev_b32 v2, 3, v0")
    D, ML = 16, 32
    for k in range(4):
        A(f"buffer_load_dwordx2 v[{ML+2*k}:{ML+2*k+1}], v2, s[32:35], s46 offen offset:{512*k}")
    for k in range(4):
        A(f"buffer_load_dwordx4 v[{D+4*k}:{D+4*k+3}], v1, s[32:35], s45 offen offset:{1024*k}")
    A(f"v_max3_f32 v3, v{ML}, v{ML+2}, v{ML+4}\nv_max_f32 v3, v3, v{ML+6}")
    A("v_mov_b32 v4, v3\nv_max_f32_dpp v3, v4, v3 row_ror:4 row_mask:0xf bank_mask:0xf")
    A("v_mov_b32 v4, v3\nv_max_f32_dpp v3, v4, v3 row_ror:8 row_mask:0xf bank_mask:0xf")
    xreduce_g(A, "v_max_f32", 3, 4)
    for k in range(4): A(f"v_sub_f32 v{ML+2*k}, v{ML+2*k}, v3")
    for k in range(4): A(f"v_exp_f32 v{ML+2*k}, v{ML+2*k}")
    for k in range(4): A(f"v_cvt_pk_bf16_f32 v{40+k}, v{ML+2*k}, 0")
    for k in range(4): A(f"v_lshlrev_b32 v{44+k}, 16, v{40+k}")
    A(f"v_mul_f32 v5, v{ML+1}, v44")
    for k in range(1, 4): A(f"v_fma_f32 v5, v{ML+2*k+1}, v{44+k}, v5")
    AC = 48
    for i in range(8): A(f"v_mov_b32 v{AC+i}, 0")
    for k in range(4):
        for d in range(4):
            A(f"v_dot2c_f32_bf16 v{AC+2*d}, v{D+4*k+d}, v{40+k}")
            A(f"v_dot2c_f32_bf16 v{AC+2*d+1}, v{D+4*k+d}, v{44+k}")
    for i in range(4):
        A(f"v_permlane32_swap_b32 v{AC+i}, v{AC+4+i}")
    for i in range(4):
        A(f"v_add_f32 v{AC+i}, v{AC+i}, v{AC+4+i}")
    for i in range(2):
        A(f"v_permlane16_swap_b32 v{AC+i}, v{AC+2+i}")
    for i in range(2):
        A(f"v_add_f32 v{AC+i}, v{AC+i}, v{AC+2+i}")
    xreduce_g(A, "v_add_f32", 5, 4)
    for x in (AC, AC+1, 5):
        A(f"v_mov_b32 v4, v{x}\nv_add_f32_dpp v{x}, v4, v{x} row_ror:4 row_mask:0xf bank_mask:0xf")
        A(f"v_mov_b32 v4, v{x}\nv_add_f32_dpp v{x}, v4, v{x} row_ror:8 row_mask:0xf bank_mask:0xf")
    A("v_lshrrev_b32 v6, 4, v0\nv_and_b32 v7, 3, v0\nv_lshlrev_b32 v6, 2, v6\nv_add_u32 v6, v6, v7\nv_lshlrev_b32 v6, 3, v6")
    A(f"s_lshl_b32 s47, s3, 7\ns_add_u32 s47, s47, {lds_base}\nv_add_u32 v6, s47, v6")
    A(f"ds_write_b64 v6, v[{AC}:{AC+1}]")
    A(f"v_lshlrev_b32 v7, 3, v7\ns_lshl_b32 s47, s3, 5\ns_add_u32 s47, s47, {lds_base + 512}\nv_add_u32 v7, s47, v7")
    A("v_mov_b32 v8, v3\nv_mov_b32 v9, v5\nds_write_b64 v7, v[8:9]")
    A("s_waitcnt lgkmcnt(0)\ns_barrier")
    Lx = lab("redx")
    A(f"s_cmp_lg_u32 s3, 0\ns_cbranch_scc1 {Lx}")
    A("v_lshrrev_b32 v6, 4, v0\nv_and_b32 v7, 3, v0\nv_lshlrev_b32 v6, 2, v6\nv_add_u32 v6, v6, v7\nv_lshlrev_b32 v6, 3, v6")
    A(f"v_add_u32 v6, {lds_base}, v6\nv_lshlrev_b32 v7, 3, v7\nv_add_u32 v7, {lds_base + 512}, v7")
    for u in range(4):
        A(f"ds_read_b64 v[{16+2*u}:{17+2*u}], v6 offset:{128*u}")
        A(f"ds_read_b64 v[{24+2*u}:{25+2*u}], v7 offset:{32*u}")
    A("v_max3_f32 v3, v24, v26, v28\nv_max_f32 v3, v3, v30")
    for u in range(4): A(f"v_sub_f32 v{24+2*u}, v{24+2*u}, v3")
    for u in range(4): A(f"v_exp_f32 v{24+2*u}, v{24+2*u}")
    A("v_mul_f32 v5, v25, v24\nv_mul_f32 v8, v16, v24\nv_mul_f32 v9, v17, v24")
    for u in range(1, 4):
        A(f"v_fma_f32 v5, v{25+2*u}, v{24+2*u}, v5")
        A(f"v_fma_f32 v8, v{16+2*u}, v{24+2*u}, v8")
        A(f"v_fma_f32 v9, v{17+2*u}, v{24+2*u}, v9")
    A("v_rcp_f32 v5, v5\nv_mul_f32 v8, v8, v5\nv_mul_f32 v9, v9, v5")
    A("v_cvt_pk_bf16_f32 v8, v8, v9")
    A("s_lshl_b32 s47, s42, 6\ns_lshl_b32 s48, s44, 4\ns_add_u32 s47, s47, s48\ns_lshl_b32 s48, s43, 2\ns_add_u32 s47, s47, s48\ns_lshl_b32 s47, s47, 4")
    A(f"s_add_u32 s47, s47, {WS_CTX}")
    A("v_and_b32 v7, 3, v0\nv_lshlrev_b32 v7, 4, v7\nv_lshrrev_b32 v6, 4, v0\nv_lshlrev_b32 v6, 2, v6\nv_add_u32 v7, v7, v6")
    A("v_and_b32 v6, 12, v0\nv_cmp_eq_u32 vcc, 0, v6")
    A("s_and_saveexec_b64 s[48:49], vcc")
    A("buffer_store_dword v8, v7, s[32:35], s47 offen")
    A("s_mov_b64 exec, s[48:49]")
    A(f"{Lx}:")

def gen_red():
    A = Asm()
    A("s_cmp_ge_u32 s2, 192\ns_cbranch_scc1 L_red_end")
    load_args(A)
    A("v_lshrrev_b32 v1, 6, v0\nv_and_b32 v0, 63, v0\ns_nop 0\nv_readfirstlane_b32 s3, v1")
    A("s_waitcnt lgkmcnt(0)")
    srd(A, 32, 22, WS_BYTES)
    A("s_mov_b32 s40, s2")
    red_body(A)
    A("L_red_end:\ns_endpgm")
    return render(A.finish())

def fin_prefetch(A, WV=16, QR=120):
    A("v_lshlrev_b32 v1, 4, v0")
    A(f"s_mul_i32 s41, s40, 12288\ns_add_u32 s41, s41, {WS_WVO}")
    for ks in range(12):
        A(f"buffer_load_dwordx4 v[{WV+4*ks}:{WV+4*ks+3}], v1, s[32:35], s41 offen offset:{(ks&3)*1024}")
        if ks & 3 == 3: A("s_add_u32 s41, s41, 4096")
    A("v_and_b32 v2, 15, v0\nv_mul_u32_u24 v2, 768, v2\nv_lshrrev_b32 v3, 4, v0\nv_lshlrev_b32 v3, 3, v3\nv_add_u32 v2, v2, v3")
    A("s_lshl_b32 s42, s40, 5")
    A(f"buffer_load_dwordx2 v[{QR}:{QR+1}], v2, s[24:27], s42 offen")
    ones4(A, 8)

def fin_body(A, WV=16, CX=64, QR=120):
    A(f"s_mov_b32 s41, {WS_CTX}")
    for ks in range(12):
        A(f"buffer_load_dwordx4 v[{CX+4*ks}:{CX+4*ks+3}], v1, s[32:35], s41 offen offset:{(ks&3)*1024}")
        if ks & 3 == 3: A("s_add_u32 s41, s41, 4096")
    D, RS, CS = 112, 116, 124
    for ks in range(12):
        mfma(A, CS, WV+4*ks, 8, "0" if ks == 0 else CS)
    for ks in range(12):
        mfma(A, D, WV+4*ks, CX+4*ks, "0" if ks == 0 else D)
        mfma(A, RS, 8, CX+4*ks, "0" if ks == 0 else RS)
    A(f"s_mov_b32 s43, {f32bits(1.0/C)}")
    A(f"v_mul_f32 v4, s43, v{RS}")
    A(f"v_lshlrev_b32 v128, 16, v{QR}\nv_and_b32 v129, 0xffff0000, v{QR}\nv_lshlrev_b32 v130, 16, v{QR+1}\nv_and_b32 v131, 0xffff0000, v{QR+1}")
    for r in range(4):
        A(f"v_fma_f32 v{D+r}, -v4, v{CS+r}, v{D+r}")
        A(f"v_add_f32 v{D+r}, v{D+r}, v{128+r}")
    A(f"v_cvt_pk_bf16_f32 v132, v{D}, v{D+1}\nv_cvt_pk_bf16_f32 v133, v{D+2}, v{D+3}")
    A("buffer_store_dwordx2 v[132:133], v2, s[28:31], s42 offen")

def gen_fin():
    A = Asm()
    A("s_cmp_ge_u32 s2, 24\ns_cbranch_scc1 L_fin_end")
    load_args(A)
    A("s_waitcnt lgkmcnt(0)")
    srd(A, 32, 22, WS_BYTES)
    srd(A, 24, 4, Q_BYTES)
    srd(A, 28, 18, Q_BYTES)
    A("s_mov_b32 s40, s2")
    fin_prefetch(A)
    fin_body(A)
    A("L_fin_end:\ns_endpgm")
    return render(A.finish())

def gen_all(path, depth=32):
    uid[0] = 0
    ks = [("pre1_kernel", 600, 64, 12288, gen_pre1, 136), ("pre2_kernel", 24, 64, 0, gen_pre2, 136),
          ("main_kernel", 256, 320, LDS_MAIN, lambda: gen_main(depth), 256), ("red_kernel", 192, 256, 1024, gen_red, 64),
          ("fin_kernel", 24, 64, 0, gen_fin, 136)]
    out = "; DINO cross-attention: five-launch version\n"
    for n, g, b, l, _, _ in ks:
        out += f"; @launch kernel={n} grid=({g},1,1) block=({b},1,1) lds={l}\n"
    out += '.amdgcn_target "amdgcn-amd-amdhsa--gfx950"\n.text\n'
    for n, g, b, l, fn, nv in ks:
        out += kernel_head(n) + fn()
    out += '.section .rodata,"a"\n'
    for n, g, b, l, fn, nv in ks:
        out += ".p2align 6\n" + kernel_desc(n, nv)
    open(path, "w").write(out)
    return build(path)

if __name__ == "__main__":
    import kern_v1
    if len(sys.argv) > 1 and sys.argv[1] == "stamps":
        kern_v1.STAMPS = True
        print(kern_v1.gen_all("v1s.s"))
    else:
        print(gen_all("v1.s"))
```
